```python
import torch

def _softmax(x, axis=-1):
    return torch.softmax(x, dim=axis)
def _gelu(x):
    return torch.nn.functional.gelu(x, approximate="tanh")
def _silu(x):
    return torch.nn.functional.silu(x)
def _sigmoid(x):
    return torch.sigmoid(x)
def _layernorm(x, axis=-1, eps=1e-5):
    m = x.mean(dim=axis, keepdim=True)
    v = x.var(dim=axis, keepdim=True, unbiased=False)
    return (x - m) / torch.sqrt(v + eps)
def _scatter_add(tgt, idx, src, axis=0):
    return tgt.clone().index_add_(axis, idx, src)
def _segment_sum(src, seg, n):
    out = torch.zeros((n,) + src.shape[1:], dtype=src.dtype)
    return out.index_add_(0, seg, src)
def _pad(x, pw):
    flat = tuple(v for pair in reversed(pw) for v in pair)
    return torch.nn.functional.pad(x, flat)

kernel_name = 'standalone__dense_activation_gelu__prompt'

def setup_inputs():

    _w = (lambda a: (lambda t: t.to(torch.bfloat16) if t.is_floating_point() else t)(torch.as_tensor(a)))
    B, S, D, F = 1, 2048, 640, 1536
    return {
        "x": _w((lambda *s: torch.randn(*s, dtype=torch.bfloat16) * 0.05)(B, S, D)),
        "w1": _w((lambda *s: torch.randn(*s, dtype=torch.bfloat16) * 3.2)(D, F) * (D ** -0.5)),
        "b1": _w((lambda *s: torch.randn(*s, dtype=torch.bfloat16) * 3.2)(F) * 0.01),
        "w2": _w((lambda *s: torch.randn(*s, dtype=torch.bfloat16) * 0.05)(F, D) * (F ** -0.5)),
        "b2": _w((lambda *s: torch.randn(*s, dtype=torch.bfloat16) * 0.1)(D) * 0.01),
    }

def reference(x, w1, b1, w2, b2):
    h = torch.einsum("bsd,df->bsf", x, w1) + b1
    h = _gelu(h)
    return torch.einsum("bsf,fd->bsd", h, w2) + b2
```

```python
import math, struct, sys

NAME = "standalone__dense_activation_gelu__prompt_kernel"
H_OFF = 0
V_OFF = 0x600000
FL_OFF = 0x800000
EP_OFF = FL_OFF
F0_OFF = FL_OFF + 0x1000
HF_OFF = FL_OFF + 0x2000
DG_OFF = FL_OFF + 0x10000
WS_SIZE = 0x900000
LDS_BYTES = 163840


def f2u(x):
    return struct.unpack("<I", struct.pack("<f", x))[0]


HEADER = """; Kernarg layout for this problem (64 bytes, ptrs only, base s[0:1]):
"""

DEFAULTS = dict(
    diag=0,
    rot1=0,
    rot2=0,
    D=3,
    r_cons=1,
    f0_pub=5,
    f0_ld=9,
    f0_chk=11,
    h0_pub=18, h1_pub=20, h2_pub=22,
    vfill={12: 1, 14: 1, 16: 1, 17: 2, 18: 2, 19: 2},
    hD=3,
    out_aux="",
    codepf=1,
    gelu_rate=4,
    spin=1 << 14,
    probe_wg=None,
    xaux='', waux='', raux='',
    probe=None,
)


class A:
    def __init__(self):
        self.L = []

    def __call__(self, s):
        self.L.append(s)

    def text(self):
        return "\n".join(self.L) + "\n"


def build_schedule(P):
    D = P["D"]
    cons = {}
    size = {}
    steps = {}
    for s in range(10):
        steps[s] = [("X", s), ("W", 0, s)]
    for p in (1, 2):
        for h in range(5):
            steps[5 + 5 * p + h] = [("W", p, 2 * h), ("W", p, 2 * h + 1)]
    for n, its in steps.items():
        for it in its:
            cons[it] = n
            size[it] = 8
    cons[("R",)] = P["r_cons"]
    size[("R",)] = 10
    for c in range(24):
        cons[("H", c)] = 20 + c
        size[("H", c)] = 8
        cons[("V", c)] = 20 + c
        size[("V", c)] = 10
    sched = {i: [] for i in range(-1, 43)}
    for n in range(20):
        i = max(n - D, -1)
        sched[i] += steps[n]
        if n == 0:
            sched[i].append(("R",))
    sched[P["f0_ld"]].append(("F0",))
    nv = 0
    for i in sorted(P["vfill"]):
        assert i > P["f0_chk"]
        for _ in range(P["vfill"][i]):
            sched[i].append(("V", nv))
            nv += 1
    hD = P["hD"]
    pubs = [P["h0_pub"], P["h1_pub"], P["h2_pub"]]
    hsched = {}
    for c in range(24):
        i = max(20 + c - hD, 19)
        i = max(i, pubs[c // 8])
        assert i < 20 + c
        hsched.setdefault(i, []).append(c)
    nblk = LDS_BYTES // 1024
    owner = [None] * nblk
    lds = {}

    def free(i):
        for b in range(nblk):
            if owner[b] is not None and cons[owner[b]] + 1 <= i:
                owner[b] = None

    def alloc(it, top=False):
        n = size[it]
        runs = []
        b = 0
        while b < nblk:
            if owner[b] is None:
                e = b
                while e < nblk and owner[e] is None:
                    e += 1
                runs.append((b, e))
                b = e
            else:
                b += 1
        cand = [r for r in runs if r[1] - r[0] >= n]
        if not cand:
            return False
        if top:
            r = cand[-1]
            st = r[1] - n
        else:
            r = cand[0]
            st = r[0]
        for b in range(st, st + n):
            owner[b] = it
        lds[it] = st * 1024
        return True

    for i in range(-1, 43):
        free(i)
        for it in sched[i]:
            if it[0] == "F0":
                continue
            ok = alloc(it, top=(it[0] in ("V", "R")))
            assert ok, ("LDS overflow", i, it)
        for c in hsched.get(i, []):
            if c % 8 == 0:
                sched[i].append(("POLL", c // 8))
            while nv <= c:
                ok = alloc(("V", nv), top=True)
                assert ok, ("LDS overflow V", i, nv)
                sched[i].append(("V", nv))
                nv += 1
            ok = alloc(("H", c))
            assert ok, ("LDS overflow", i, c)
            sched[i].append(("H", c))
        if i >= 20 and nv < 24:
            save = (list(owner), dict(lds))
            if alloc(("V", nv), top=True):
                sched[i].append(("V", nv))
                nv += 1
    assert nv == 24
    return sched, cons, lds


NINSTR = {"X": 4, "W": 4, "R": 5, "H": 4, "V": 5, "F0": 1, "POLL": 0}


def gen(**kw):
    P = dict(DEFAULTS)
    P.update(kw)
    sched, cons, lds = build_schedule(P)
    a = A()
    a(HEADER.rstrip())
    a(f"; @launch grid=(256,1,1) block=(384,1,1) lds={LDS_BYTES}")
    a('.amdgcn_target "amdgcn-amd-amdhsa--gfx950"')
    a(".text")
    a(f".globl {NAME}")
    a(".p2align 8")
    a(f".type {NAME},@function")
    a(f"{NAME}:")
    diag = P["diag"]
    a("s_cmp_ge_u32 s2, 256")
    a("s_cbranch_scc1 L_end")
    a("s_load_dwordx16 s[4:19], s[0:1], 0")
    probe = P["probe"]
    if diag or probe is not None:
        a("s_memtime s[90:91]")
        a("s_memrealtime s[92:93]")
    a("v_lshrrev_b32 v1, 6, v0")
    a("v_and_b32 v0, 63, v0")
    a("s_and_b32 s52, s2, 7")
    a("v_readfirstlane_b32 s50, v1")
    a("s_lshr_b32 s53, s2, 3")
    a("s_and_b32 s54, s53, 7")
    a("s_lshr_b32 s55, s53, 3")
    a("s_lshr_b32 s48, s52, 1")
    a("s_lshl_b32 s48, s48, 3")
    a("s_add_u32 s48, s48, s54")
    a("s_and_b32 s49, s52, 1")
    a("s_lshl_b32 s49, s49, 2")
    a("s_add_u32 s49, s49, s55")
    a("s_cmp_ge_u32 s50, 4")
    a("s_cbranch_scc1 L_loader")

    def srd(d, b, n):
        a(f"s_mov_b32 s{d}, s{b}")
        a(f"s_and_b32 s{d+1}, s{b+1}, 0xffff")
        a(f"s_mov_b32 s{d+2}, {n}")
        a(f"s_mov_b32 s{d+3}, 0x20000")

    def win(addr):
        return addr >> 16, addr & 0xffff

    XB = 96
    ACC = [64, 80, 64]
    WR = 32
    PK = 16
    TM = 24
    a("s_and_b32 s56, s50, 1")
    a("s_lshr_b32 s57, s50, 1")
    a("v_lshrrev_b32 v14, 5, v0")
    a("v_lshlrev_b32 v1, 10, v14")
    a("v_bfe_u32 v15, v0, 2, 2")
    a("v_lshl_add_u32 v1, v15, 7, v1")
    a("v_lshrrev_b32 v15, 1, v15")
    a("v_xor_b32 v15, s57, v15")
    a("v_lshl_add_u32 v1, v15, 6, v1")
    a("v_bfe_u32 v15, v0, 4, 1")
    a("v_lshl_add_u32 v1, v15, 5, v1")
    a("v_and_b32 v15, 3, v0")
    a("v_lshl_add_u32 v1, v15, 3, v1")
    a("v_add_u32 v2, 0x10000, v1")
    a("v_add_u32 v3, 0x20000, v1")
    a("v_and_b32 v15, 31, v0")
    a("s_lshl_b32 s58, s56, 12")
    a("v_lshlrev_b32 v16, 7, v15")
    a("v_add_u32 v16, s58, v16")
    a("v_bfe_u32 v17, v0, 1, 3")
    a("v_xor_b32 v17, v14, v17")
    a("v_lshl_add_u32 v16, v17, 4, v16")
    for u in (1, 2, 3):
        a(f"v_xor_b32 v{16+u}, {u << 5}, v16")
    for wdw in (1, 2):
        for u in range(4):
            a(f"v_add_u32 v{16+4*wdw+u}, {hex(wdw << 16)}, v{16+u}")
    a("v_bfe_u32 v4, v0, 4, 1")
    a("v_lshlrev_b32 v4, 10, v4")
    a("s_lshl_b32 s58, s56, 11")
    a("v_add_u32 v4, s58, v4")
    a("v_lshl_add_u32 v4, v14, 8, v4")
    a("v_and_b32 v28, 15, v0")
    a("v_lshl_add_u32 v4, v28, 4, v4")
    c = math.sqrt(2.0 / math.pi)
    k0 = -2.0 * c * math.log2(math.e)
    k1 = k0 * 0.044715
    a(f"v_mov_b32 v5, {hex(f2u(k1))}")
    K0 = hex(f2u(k0))
    a("v_mov_b32 v9, 0")
    a("v_mov_b32 v10, 0x3f80")
    a("v_mov_b32 v11, 0")
    a("v_mov_b32 v12, 0")
    a("v_mov_b32 v13, 0")
    a("s_mul_i32 s58, s49, 384")
    a("s_lshl_b32 s59, s57, 6")
    a("s_add_u32 s58, s58, s59")
    a("v_lshl_add_u32 v29, v15, 1, s58")
    a("v_lshl_add_u32 v29, v14, 16, v29")
    a("s_mul_i32 s60, s48, 48")
    a("s_mul_i32 s59, s49, 6")
    a("s_add_u32 s60, s60, s59")
    a("s_add_u32 s60, s60, s57")
    a("s_lshl_b32 s60, s60, 12")
    a("s_waitcnt lgkmcnt(0)")
    a("s_add_u32 s62, s18, %d" % EP_OFF)
    a("s_addc_u32 s63, s19, 0")
    a("s_load_dword s51, s[62:63], 0")
    srd(32, 18, WS_SIZE)
    srd(36, 8, 3072)
    srd(40, 12, 1280)
    srd(44, 14, 2048 * 1280)
    a("buffer_load_ushort v8, v29, s[36:39], 0 offen")
    a("buffer_load_ushort v6, v29, s[36:39], 0 offen offset:128")
    a("buffer_load_ushort v7, v29, s[36:39], 0 offen offset:256")
    if P["codepf"]:
        a("s_cmp_lg_u32 s50, 3")
        a("s_cbranch_scc1 L_nopf")
        a("s_getpc_b64 s[64:65]")
        a("L_pc:")
        a(f"s_sub_u32 s64, s64, L_pc-{NAME}")
        a("s_subb_u32 s65, s65, 0")
        a("s_lshl_b32 s59, s53, 10")
        a("s_cmp_ge_u32 s59, L_codeend-%s" % NAME)
        a("s_cbranch_scc1 L_nopf")
        a("v_lshl_add_u32 v30, v0, 4, s59")
        a("global_load_dwordx4 v[92:95], v30, s[64:65]")
        a("L_nopf:")
    a("s_waitcnt lgkmcnt(0)")
    a("s_mul_i32 s51, s51, 1664525")
    a("s_add_u32 s51, s51, 1013904223")
    a("s_waitcnt vmcnt(0)")

    def flag_store(soff_code, label):
        a("s_cmp_lg_u32 s50, 0")
        a(f"s_cbranch_scc1 {label}")
        for l in soff_code:
            a(l)
        a("v_mov_b32 v14, s51")
        a("v_mov_b32 v15, 0")
        a("s_mov_b64 exec, 1")
        a("buffer_store_dword v14, v15, s[32:35], s59 offen sc1")
        a("s_mov_b64 exec, -1")
        a(f"{label}:")

    def gelu_stream(acc):
        q = []
        for g4 in range(4):
            r = [acc + 4 * g4 + i for i in range(4)]
            t = [TM + (g4 & 1) * 4 + i for i in range(4)]
            for i in range(4):
                q.append(f"v_mul_f32 v{t[i]}, v{r[i]}, v{r[i]}")
            for i in range(4):
                q.append(f"v_fmaak_f32 v{t[i]}, v{t[i]}, v5, {K0}")
            for i in range(4):
                q.append(f"v_mul_f32 v{t[i]}, v{r[i]}, v{t[i]}")
            for i in range(4):
                q.append(f"v_exp_f32 v{t[i]}, v{t[i]}")
            for i in range(4):
                q.append(f"v_add_f32 v{t[i]}, 1.0, v{t[i]}")
            for i in range(4):
                q.append(f"v_rcp_f32 v{t[i]}, v{t[i]}")
            for i in range(4):
                q.append(f"v_mul_f32 v{t[i]}, v{r[i]}, v{t[i]}")
            q.append(f"v_cvt_pk_bf16_f32 v{PK+2*g4}, v{t[0]}, v{t[1]}")
            q.append(f"v_cvt_pk_bf16_f32 v{PK+2*g4+1}, v{t[2]}, v{t[3]}")
        return q

    def hstore(p):
        return [f"s_add_u32 s61, s60, {p*8192 + H_OFF}",
                f"buffer_store_dwordx4 v[{PK}:{PK+3}], v4, s[32:35], s61 offen sc1",
                f"buffer_store_dwordx4 v[{PK+4}:{PK+7}], v4, s[32:35], s61 offen offset:512 sc1"]

    def tr_reads(p, s, u4, slot):
        base = lds[("W", p, s)]
        out = []
        for u in range(2):
            w, imm = win(base + (16 * u4 + 4 * u) * 128)
            r = WR + 4 * slot + 2 * u
            out.append(f"ds_read_b64_tr_b16 v[{r}:{r+1}], v{1+w} offset:{imm}")
        return out

    def mfma1(p, s, u4, slot):
        acc = ACC[p]
        x = XB + 16 * s + 4 * u4
        w = WR + 4 * slot
        return f"v_mfma_f32_32x32x16_bf16 v[{acc}:{acc+15}], v[{w}:{w+3}], v[{x}:{x+3}], v[{acc}:{acc+15}]"

    def bias_mfma(p):
        acc = ACC[p]
        return f"v_mfma_f32_32x32x16_bf16 v[{acc}:{acc+15}], v[8:11], v[10:13], 0"

    pubs = {P["h0_pub"]: 0, P["h1_pub"]: 1, P["h2_pub"]: 2}

    def pre_barrier(n):
        if n == P["f0_pub"] or n in pubs:
            if n in pubs and pubs[n] == 1 and n >= 20 and P["h2_pub"] > n:
                a("s_waitcnt vmcnt(2)")
            else:
                a("s_waitcnt vmcnt(0)")

    def post_barrier(n):
        if n == P["f0_pub"]:
            flag_store(["s_lshr_b32 s59, s2, 4", "s_lshl_b32 s59, s59, 7", "s_and_b32 s58, s2, 15",
                        "s_lshl_b32 s58, s58, 2", "s_add_u32 s59, s59, s58",
                        f"s_add_u32 s59, s59, {F0_OFF}"], "L_f0d")
        if n in pubs:
            p = pubs[n]
            flag_store(["s_mul_i32 s59, s48, 768", "s_lshl_b32 s58, s49, 2", "s_add_u32 s59, s59, s58",
                        f"s_add_u32 s59, s59, {HF_OFF + p*256}"], f"L_hf{p}")
        if n == P["f0_chk"] + 1:
            a("s_cmp_lg_u32 s2, 0")
            a(f"s_cbranch_scc1 L_ep")
            flag_store([f"s_mov_b32 s59, {EP_OFF}"], "L_ep")

    frs = [(p, s, u4) for p in range(3) for s in range(10) for u4 in range(4)]
    a(bias_mfma(0))
    gq = []
    nread = 0
    nmf = 0
    lg = []

    def wait_frag(k):
        idx = [i for i, t in enumerate(lg) if t == k]
        if not idx:
            return
        last = idx[-1]
        n = len(lg) - 1 - last
        a(f"s_waitcnt lgkmcnt({min(n, 15)})")
        del lg[:last + 1]

    state = dict(since=100)

    def filler(n):
        for _ in range(n):
            if gq and state["since"] >= 3:
                a(gq.pop(0))

    def issue_mfma():
        nonlocal nmf
        p, s, u4 = frs[nmf]
        if s == 0 and u4 == 0 and p > 0:
            while gq:
                a(gq.pop(0))
            a(f"v_mov_b32 v8, v{5+p}")
            a("s_nop 1")
            a(bias_mfma(p))
            gq.extend(gelu_stream(ACC[p - 1]) + hstore(p - 1))
            state["since"] = 0
        wait_frag(nmf)
        a(mfma1(p, s, u4, nmf % 8))
        nmf += 1
        state["since"] += 1

    def issue_read():
        nonlocal nread
        p, s, u4 = frs[nread]
        assert nread - nmf < 8
        if p == 0:
            w, imm = win(lds[("X", s)])
            x = XB + 16 * s + 4 * u4
            a(f"ds_read_b128 v[{x}:{x+3}], v{16+4*w+u4} offset:{imm}")
            lg.append(nread)
        for l in tr_reads(p, s, u4, nread % 8):
            a(l)
            lg.append(nread)
        nread += 1

    for n in range(20):
        pre_barrier(n)
        a("s_barrier")
        post_barrier(n)
        nfr = 4 if n < 10 else 8
        tgt_r = nread + nfr
        tgt_m = tgt_r - 4
        first = True
        while nread < tgt_r or nmf < tgt_m:
            if nmf < tgt_m:
                issue_mfma()
            k = 0
            while nread < tgt_r and nread - nmf < 8 and k < (2 if nmf < tgt_m else 8):
                issue_read()
                k += 1
            filler(P["gelu_rate"] if k == 0 else max(P["gelu_rate"] - 2 * k, 0))
        if n == P["r_cons"]:
            a("s_cmp_ge_u32 s50, 2")
            a("s_cbranch_scc1 L_norp")
            a("s_cmp_ge_u32 s2, 192")
            a("s_cbranch_scc1 L_norp")
            T = XB + 16 * 8
            a("s_waitcnt lgkmcnt(0)")
            rb = lds[("R",)]
            a(f"v_bfe_u32 v{T+20}, v0, 2, 2")
            a(f"v_mul_u32_u24 v{T+20}, 1280, v{T+20}")
            a(f"v_lshrrev_b32 v{T+21}, 4, v0")
            a(f"v_mul_u32_u24 v{T+22}, 160, v{T+21}")
            a(f"v_add_u32 v{T+20}, v{T+20}, v{T+22}")
            a("s_mul_i32 s58, s50, 640")
            a(f"s_add_u32 s58, s58, {rb}")
            a(f"v_add_u32 v{T+20}, s58, v{T+20}")
            a(f"v_and_b32 v{T+22}, 3, v0")
            a(f"v_lshl_add_u32 v{T+23}, v{T+22}, 3, v{T+20}")
            a(f"v_lshl_add_u32 v{T+20}, v{T+22}, 4, v{T+20}")
            for t in range(5):
                off = (64 * (t >> 1) + 8 * (t & 1)) if t < 4 else 128
                ar = T + 20 if t < 4 else T + 23
                a(f"ds_read_b64_tr_b16 v[{T+4*t}:{T+4*t+1}], v{ar} offset:{off}")
                a(f"ds_read_b64_tr_b16 v[{T+4*t+2}:{T+4*t+3}], v{ar} offset:{off+5120}")
            a(f"v_mul_u32_u24 v{T+21}, 245760, v{T+21}")
            a(f"v_and_b32 v{T+22}, 15, v0")
            a(f"v_lshl_add_u32 v{T+21}, v{T+22}, 4, v{T+21}")
            a("s_mul_i32 s58, s50, 192")
            a("s_lshr_b32 s59, s2, 2")
            a("s_add_u32 s58, s58, s59")
            a("s_mul_i32 s58, s58, 5120")
            a("s_and_b32 s59, s2, 3")
            a("s_lshl_b32 s59, s59, 8")
            a("s_add_u32 s58, s58, s59")
            a(f"s_add_u32 s58, s58, {V_OFF}")
            a("s_add_u32 s59, s58, 4096")
            a("s_waitcnt lgkmcnt(0)")
            for t in range(4):
                a(f"buffer_store_dwordx4 v[{T+4*t}:{T+4*t+3}], v{T+21}, s[32:35], s58 offen offset:{1024*t} sc1")
            a(f"buffer_store_dwordx4 v[{T+16}:{T+19}], v{T+21}, s[32:35], s59 offen sc1")
            a("L_norp:")
        a("s_waitcnt lgkmcnt(0)")
        lg.clear()
    while nmf < 120:
        issue_mfma()
        filler(P["gelu_rate"])
    while gq:
        a(gq.pop(0))
    FB = [96, 144]
    A2 = 192
    B2 = 212
    a("v_lshlrev_b32 v224, 4, v0")
    a("v_add_u32 v225, 0x10000, v224")
    a("v_add_u32 v226, 0x20000, v224")
    a("s_lshl_b32 s58, s50, 10")
    a("v_add_u32 v227, s58, v224")
    a("v_add_u32 v228, s58, v225")
    a("v_add_u32 v229, s58, v226")
    a("v_lshrrev_b32 v232, 4, v0")
    a("s_mul_i32 s58, s49, 160")
    a("v_lshl_add_u32 v230, v232, 4, s58")
    a("v_lshl_add_u32 v231, v232, 3, s58")
    a(f"buffer_load_dwordx4 v[{B2}:{B2+3}], v230, s[40:43], 0 offen")
    a(f"buffer_load_dwordx4 v[{B2+4}:{B2+7}], v230, s[40:43], 0 offen offset:64")
    a(f"buffer_load_dwordx2 v[{B2+8}:{B2+9}], v231, s[40:43], 0 offen offset:128")
    a("v_and_b32 v232, 15, v0")
    a("s_lshl_b32 s58, s48, 2")
    a("s_add_u32 s58, s58, s50")
    a("s_lshl_b32 s58, s58, 4")
    a("v_add_u32 v232, s58, v232")
    a("v_mul_u32_u24 v232, 1280, v232")
    a("v_add_u32 v230, v230, v232")
    a("v_add_u32 v231, v231, v232")
    for l in gelu_stream(ACC[2]) + hstore(2):
        a(l)
    a("s_waitcnt vmcnt(2)")
    for t in range(5):
        for r in range(4):
            d = B2 + 2 * t + (r >> 1)
            if r & 1:
                a(f"v_and_b32 v{A2+4*t+r}, 0xffff0000, v{d}")
            else:
                a(f"v_lshlrev_b32 v{A2+4*t+r}, 16, v{d}")

    def p2_reads(c):
        fb = FB[c & 1]
        out = []
        for kb in range(2):
            w, imm = win(lds[("H", c)] + kb * 4096)
            r = fb + kb * 24
            out.append(f"ds_read_b128 v[{r}:{r+3}], v{227+w} offset:{imm}")
            for t in range(5):
                w, imm = win(lds[("V", c)] + kb * 5120 + t * 1024)
                r = fb + kb * 24 + 4 + 4 * t
                out.append(f"ds_read_b128 v[{r}:{r+3}], v{224+w} offset:{imm}")
        return out

    def p2_mfma(c):
        fb = FB[c & 1]
        out = []
        for kb in range(2):
            h = fb + kb * 24
            for t in range(5):
                v = h + 4 + 4 * t
                out.append(f"v_mfma_f32_16x16x32_bf16 v[{A2+4*t}:{A2+4*t+3}], v[{v}:{v+3}], v[{h}:{h+3}], v[{A2+4*t}:{A2+4*t+3}]")
        return out

    for c in range(24):
        n = 20 + c
        pre_barrier(n)
        a("s_barrier")
        post_barrier(n)
        rd = p2_reads(c)
        mm = p2_mfma(c - 1) if c > 0 else []
        while rd or mm:
            if mm:
                a(mm.pop(0))
            for _ in range(2):
                if rd:
                    a(rd.pop(0))
        if c < 23:
            a("s_waitcnt lgkmcnt(0)")
    mm = p2_mfma(23)
    for i, m in enumerate(mm):
        kb, t = divmod(i, 5)
        a(f"s_waitcnt lgkmcnt({11 - (kb*6 + t + 1)})")
        a(m)
    a("s_nop 7")
    for t in range(5):
        a(f"v_cvt_pk_bf16_f32 v{B2+2*t}, v{A2+4*t}, v{A2+4*t+1}")
        a(f"v_cvt_pk_bf16_f32 v{B2+2*t+1}, v{A2+4*t+2}, v{A2+4*t+3}")
    oa = P["out_aux"]
    a(f"buffer_store_dwordx4 v[{B2}:{B2+3}], v230, s[44:47], 0 offen {oa}")
    a(f"buffer_store_dwordx4 v[{B2+4}:{B2+7}], v230, s[44:47], 0 offen offset:64 {oa}")
    a(f"buffer_store_dwordx2 v[{B2+8}:{B2+9}], v231, s[44:47], 0 offen offset:128 {oa}")
    if diag or probe is not None:
        a("s_waitcnt vmcnt(0)")
        a("s_barrier")
    a("s_endpgm")

    a(".p2align 6")
    a("L_loader:")
    a("s_sub_u32 s56, s50, 4")
    a("s_lshl_b32 s57, s56, 10")
    a("s_lshl_b32 s58, s56, 12")
    a("s_mul_i32 s59, s56, 5120")
    a("v_lshrrev_b32 v1, 3, v0")
    a("s_lshl_b32 s60, s56, 3")
    a("v_add_u32 v1, s60, v1")
    a("v_and_b32 v5, 7, v0")
    a("v_bfe_u32 v6, v1, 1, 3")
    a("v_xor_b32 v6, v5, v6")
    a("v_mul_u32_u24 v2, 1280, v1")
    a("v_lshl_add_u32 v2, v6, 4, v2")
    a("v_bfe_u32 v6, v0, 4, 1")
    a("v_lshlrev_b32 v6, 2, v6")
    a("v_xor_b32 v6, v5, v6")
    a("v_mul_u32_u24 v3, 3072, v1")
    a("v_lshl_add_u32 v3, v6, 4, v3")
    a("v_lshlrev_b32 v4, 4, v0")
    a("v_lshlrev_b32 v7, 7, v1")
    a("v_lshl_add_u32 v7, v5, 3, v7")
    if P["rot1"] == 0:
        a("s_mov_b32 s61, 0")
    else:
        a("s_lshl_b32 s61, s55, 1")
        a("s_add_u32 s61, s61, s54")
        a("s_and_b32 s61, s61, 7")
        if P["rot1"] == 1:
            a("s_mul_i32 s61, s61, 5")
            a("s_lshr_b32 s61, s61, 2")
        elif P["rot1"] == 2:
            a("s_and_b32 s61, s61, 2")
            a("s_mul_i32 s61, s61, 5")
            a("s_lshr_b32 s61, s61, 1")
    if P["rot2"] == 0:
        a("s_mov_b32 s62, 0")
    else:
        a("s_lshl_b32 s62, s55, 1")
        a("s_add_u32 s62, s62, s54")
    a("s_mul_i32 s63, s48, %d" % (64 * 1280))
    a("s_mul_i32 s64, s49, 384")
    a("s_mul_i32 s65, s48, %d" % (48 * 4096))
    a("s_add_u32 s65, s65, s58")
    a("s_mul_i32 s66, s49, %d" % (48 * 5120))
    a("s_add_u32 s66, s66, s59")
    a(f"s_add_u32 s66, s66, {V_OFF}")
    a("s_lshr_b32 s67, s2, 2")
    a("s_lshl_b32 s67, s67, 5")
    a("s_and_b32 s68, s2, 2")
    a("s_lshl_b32 s68, s68, 3")
    a("s_add_u32 s67, s67, s68")
    a("s_and_b32 s68, s2, 1")
    a("s_lshl_b32 s68, s68, 2")
    a("s_add_u32 s67, s67, s68")
    a("s_add_u32 s67, s67, s60")
    a("s_mul_i32 s67, s67, 1280")
    a("s_waitcnt lgkmcnt(0)")
    srd(20, 4, 2048 * 1280)
    srd(24, 6, 640 * 3072)
    srd(28, 10, 1536 * 1280)
    srd(32, 18, WS_SIZE)
    a("s_add_u32 s84, s18, %d" % EP_OFF)
    a("s_addc_u32 s85, s19, 0")
    a("s_load_dword s51, s[84:85], 0")
    a("s_mul_i32 s68, s48, 768")
    a(f"s_add_u32 s68, s68, {HF_OFF}")
    a("s_add_u32 s70, s18, s68")
    a("s_addc_u32 s71, s19, 0")

    def kc(s):
        a(f"s_add_u32 s69, s61, {s}")
        if P["rot1"]:
            a("s_sub_u32 s72, s69, 10")
            a("s_cselect_b32 s69, s69, s72")

    issued = []

    def emit_item(it):
        k = it[0]
        if k == "X":
            kc(it[1])
            a("s_lshl_b32 s69, s69, 7")
            a("s_add_u32 s69, s69, s63")
            for i2 in range(4):
                a(f"s_add_u32 m0, s57, {lds[it] + 2048*i2}")
                if i2:
                    a(f"s_add_u32 s69, s69, {16*1280}")
                else:
                    a("s_nop 0")
                a(f"buffer_load_dwordx4 v2, s[20:23], s69 offen {P['xaux']} lds")
        elif k == "W":
            kc(it[2])
            a(f"s_mul_i32 s69, s69, {64*3072}")
            a("s_add_u32 s69, s69, s64")
            for i2 in range(4):
                a(f"s_add_u32 m0, s57, {lds[it] + 2048*i2}")
                a(f"s_add_u32 s69, s69, {16*3072 if i2 else 128*it[1]}")
                a(f"buffer_load_dwordx4 v3, s[24:27], s69 offen {P['waux']} lds")
        elif k == "R":
            a(f"s_add_u32 m0, s59, {lds[it]}")
            a("s_add_u32 s69, s67, 4096")
            for i in range(4):
                a(f"buffer_load_dwordx4 v4, s[28:31], s67 offen offset:{1024*i} {P['raux']} lds")
            a(f"s_add_u32 m0, s59, {lds[it] + 4096}")
            a("s_nop 0")
            a(f"buffer_load_dwordx4 v4, s[28:31], s69 offen {P['raux']} lds")
        elif k in ("H", "V"):
            c = it[1]
            p, idx = divmod(c, 8)
            unit = 8192 if k == "H" else 10240
            a(f"s_add_u32 s69, s62, {idx}")
            a("s_and_b32 s69, s69, 7")
            a(f"s_mul_i32 s69, s69, {3*unit}")
            a(f"s_add_u32 s69, s69, s{65 if k == 'H' else 66}")
            a(f"s_add_u32 m0, s{58 if k == 'H' else 59}, {lds[it]}")
            a(f"s_add_u32 s69, s69, {p*unit}")
            for i in range(4):
                a(f"buffer_load_dwordx4 v4, s[32:35], s69 offen offset:{1024*i} sc1 lds")
            if k == "V":
                a(f"s_add_u32 m0, s59, {lds[it] + 4096}")
                a("s_add_u32 s69, s69, 4096")
                a("buffer_load_dwordx4 v4, s[32:35], s69 offen sc1 lds")
        elif k == "F0":
            a(f"s_mov_b32 s73, {F0_OFF}")
            a("buffer_load_dwordx2 v[8:9], v7, s[32:35], s73 offen sc1")
        elif k == "POLL":
            p = it[1]
            a(f"s_mov_b32 s72, {P['spin']}")
            a(f"L_poll{p}:")
            a(f"s_load_dwordx8 s[76:83], s[70:71], {p*256} glc")
            a("s_waitcnt lgkmcnt(0)")
            a("s_xor_b32 s76, s76, s51")
            for i in range(1, 8):
                a(f"s_xor_b32 s{76+i}, s{76+i}, s51")
                a(f"s_or_b32 s76, s76, s{76+i}")
            a(f"s_cbranch_scc0 L_pollok{p}")
            a("s_sub_u32 s72, s72, 1")
            a(f"s_cbranch_scc0 L_poll{p}")
            a(f"L_pollok{p}:")
            if diag:
                a(f"v_writelane_b32 v10, s72, {60+p}")
        for _ in range(NINSTR[k]):
            issued.append(it)

    def wait_for(pred):
        idx = [i for i, it in enumerate(issued) if pred(it)]
        if not idx:
            return
        last = idx[-1]
        n = len(issued) - 1 - last
        a(f"s_waitcnt vmcnt({min(n, 63)})")
        del issued[:last + 1]

    if diag:
        a("v_mov_b32 v10, 0")
        a("v_mov_b32 v11, 0")
    for i in range(-1, 43):
        for it in sched[i]:
            emit_item(it)
        if i == -1:
            a("s_waitcnt lgkmcnt(0)")
            a("s_mul_i32 s51, s51, 1664525")
            a("s_add_u32 s51, s51, 1013904223")
        if i == P["f0_chk"]:
            wait_for(lambda it: it[0] == "F0" or (it in cons and cons[it] <= i + 1))
            a(f"s_mov_b32 s72, {P['spin']}")
            a("L_f0chk:")
            a("v_cmp_ne_u32 vcc, s51, v8")
            a("v_cmp_ne_u32 s[74:75], s51, v9")
            a("s_nop 1")
            a("s_or_b64 vcc, vcc, s[74:75]")
            a("s_cbranch_scc0 L_f0ok")
            a("buffer_load_dwordx2 v[8:9], v7, s[32:35], s73 offen sc1")
            a("s_waitcnt vmcnt(0)")
            a("s_sub_u32 s72, s72, 1")
            a("s_cbranch_scc0 L_f0chk")
            a("L_f0ok:")
            if diag:
                a(f"v_writelane_b32 v10, s72, 63")
        else:
            wait_for(lambda it: it in cons and cons[it] <= i + 1)
        if diag:
            a("s_memtime s[86:87]")
        a("s_barrier")
        if probe is not None and probe == i + 1:
            a("s_memrealtime s[86:87]")
            a("s_waitcnt lgkmcnt(0)")
        if diag:
            a("s_memtime s[88:89]")
            a("s_waitcnt lgkmcnt(0)")
            a(f"v_writelane_b32 v10, s86, {i+1}")
            a(f"v_writelane_b32 v11, s88, {i+1}")
    if diag:
        a("s_barrier")
        a("s_memtime s[86:87]")
        a("s_memrealtime s[88:89]")
        a("s_waitcnt lgkmcnt(0)")
        a("v_writelane_b32 v11, s86, 60")
        a("v_writelane_b32 v11, s88, 61")
        a("v_writelane_b32 v11, s90, 62")
        a("v_writelane_b32 v11, s92, 63")
        a("s_cmp_lg_u32 s50, 4")
        a("s_cbranch_scc1 L_end")
        a("s_lshl_b32 s69, s2, 9")
        a(f"s_add_u32 s69, s69, {DG_OFF}")
        a("v_lshlrev_b32 v5, 2, v0")
        a("buffer_store_dword v10, v5, s[32:35], s69 offen")
        a("buffer_store_dword v11, v5, s[32:35], s69 offen offset:256")
    if probe is not None:
        a("s_barrier")
        if probe == 44:
            a("s_memrealtime s[86:87]")
            a("s_waitcnt lgkmcnt(0)")
        if probe == 45:
            a("s_memtime s[86:87]")
            a("s_waitcnt lgkmcnt(0)")
            a("s_sub_u32 s86, s86, s90")
            a("s_mul_hi_u32 s86, s86, 429496730")
            a("s_add_u32 s86, s86, s92")
        if probe == -1:
            a("s_mov_b32 s86, s92")
        a("s_add_u32 s86, s86, 5000")
        if P["probe_wg"] is not None:
            a(f"s_cmp_lg_u32 s2, {P['probe_wg']}")
            a("s_cbranch_scc1 L_end")
        a("L_spin:")
        a("s_memrealtime s[88:89]")
        a("s_waitcnt lgkmcnt(0)")
        a("s_sub_u32 s88, s88, s86")
        a("s_cmp_lt_i32 s88, 0")
        a("s_cbranch_scc1 L_spin")
    a("L_end:")
    a("s_endpgm")
    a("L_codeend:")
    a(".fill 256, 4, 0xbf800000")
    a(f""".section .rodata,"a"
.p2align 6
.amdhsa_kernel {NAME}
  .amdhsa_next_free_vgpr 256
  .amdhsa_next_free_sgpr 96
  .amdhsa_accum_offset 256
  .amdhsa_group_segment_fixed_size 0
  .amdhsa_kernarg_size 64
  .amdhsa_user_sgpr_count 2
  .amdhsa_user_sgpr_kernarg_segment_ptr 1
  .amdhsa_system_sgpr_workgroup_id_x 1
.end_amdhsa_kernel""")
    return a.text()


if __name__ == "__main__":
    import ast
    kw = {}
    out = None
    for arg in sys.argv[1:]:
        if "=" in arg:
            k, v = arg.split("=", 1)
            try:
                kw[k] = ast.literal_eval(v)
            except Exception:
                kw[k] = v
        else:
            out = arg
    s = gen(**kw)
    if out:
        open(out, "w").write(s)
    else:
        P = dict(DEFAULTS); P.update(kw)
        sched, cons, lds = build_schedule(P)
        for i in sorted(sched):
            print(i, [(it, lds.get(it, 0) // 1024) for it in sched[i]])
```

```python
import gen as G, sys
def probe(body, amp=16, wg=None, stat_from="s[22:23]"):
    L = []
    a = L.append
    a(".text\n.globl pr_kernel\n.p2align 8\n.type pr_kernel,@function\npr_kernel:")
    a("s_memrealtime s[20:21]")
    a("s_cmp_ge_u32 s2, 256")
    a("s_cbranch_scc1 PL_end")
    a("s_load_dwordx16 s[4:19], s[0:1], 0")
    a("v_lshlrev_b32 v6, 7, v0")
    a("v_lshlrev_b32 v5, 4, v0")
    a("s_waitcnt lgkmcnt(0)")
    for d, b, n in ((24, 4, 2048*1280), (28, 6, 640*3072), (32, 10, 1536*1280), (36, 18, 0x1000000)):
        a(f"s_mov_b32 s{d}, s{b}\ns_and_b32 s{d+1}, s{b+1}, 0xffff\ns_mov_b32 s{d+2}, {n}\ns_mov_b32 s{d+3}, 0x20000")
    a("s_memrealtime s[22:23]")
    a("s_waitcnt lgkmcnt(0)")
    L.extend(body)
    a("s_waitcnt vmcnt(0)")
    a("s_memrealtime s[40:41]")
    a("s_waitcnt lgkmcnt(0)")
    if stat_from == "karg":
        a("s_sub_u32 s40, s22, s20")
    else:
        a("s_sub_u32 s40, s40, s22")
    a(f"s_mul_i32 s40, s40, {amp}")
    a("s_add_u32 s40, s40, s20")
    a("s_add_u32 s40, s40, 3000")
    if wg is not None:
        a(f"s_cmp_lg_u32 s2, {wg}")
        a("s_cbranch_scc1 PL_end")
    a("PL_spin:")
    a("s_memrealtime s[42:43]")
    a("s_waitcnt lgkmcnt(0)")
    a("s_sub_u32 s42, s42, s40")
    a("s_cmp_lt_i32 s42, 0")
    a("s_cbranch_scc1 PL_spin")
    a("PL_end:")
    a("s_endpgm")
    kd = """.amdhsa_kernel pr_kernel
  .amdhsa_next_free_vgpr 64
  .amdhsa_next_free_sgpr 96
  .amdhsa_accum_offset 64
  .amdhsa_group_segment_fixed_size 0
  .amdhsa_kernarg_size 64
  .amdhsa_user_sgpr_count 2
  .amdhsa_user_sgpr_kernarg_segment_ptr 1
  .amdhsa_system_sgpr_workgroup_id_x 1
.end_amdhsa_kernel
"""
    base = G.gen()
    base = base.replace(f"; @launch grid=(256,1,1) block=(384,1,1) lds={G.LDS_BYTES}",
        f"; @launch kernel=pr_kernel grid=(256,1,1) block=(64,1,1) lds={G.LDS_BYTES}\n; @launch kernel={G.NAME} grid=(256,1,1) block=(384,1,1) lds={G.LDS_BYTES}")
    base = base.replace('.section .rodata,"a"', "\n".join(L) + '\n.section .rodata,"a"')
    return base + ".p2align 6\n" + kd

def share(srd, nbytes, aux="", reg=8):
    out = [f"s_mul_i32 s44, s2, {nbytes}"]
    lines = nbytes // 128
    i = 0
    while lines > 0:
        n = min(lines, 64)
        if n < 64:
            out.append(f"s_mov_b64 exec, {hex((1 << n) - 1)}" if n <= 31 else f"s_bfm_b64 exec, {n}, 0")
        out.append(f"buffer_load_dword v{reg+i}, v6, s[{srd}:{srd+3}], s44 offen {aux}")
        out.append("s_add_u32 s44, s44, 8192")
        if n < 64: out.append("s_mov_b64 exec, -1")
        lines -= n; i += 1
    return out

if __name__ == "__main__":
    which = sys.argv[1]
    if which == "A":
        open("p1.s","w").write(probe([]))
        open("p2.s","w").write(probe([], stat_from="karg"))
        open("p3.s","w").write(probe(share(24, 128)))
        open("p4.s","w").write(probe(share(24, 10240)))
        open("p5.s","w").write(probe(share(24, 10240) + share(28, 7680, reg=12)))
        open("p6.s","w").write(probe(share(24, 10240, "nt") + share(28, 7680, "nt", reg=12)))
```
